```python
import torch

def _softmax(x, axis=-1):
    return torch.softmax(x, dim=axis)
def _gelu(x):
    return torch.nn.functional.gelu(x, approximate="tanh")
def _silu(x):
    return torch.nn.functional.silu(x)
def _sigmoid(x):
    return torch.sigmoid(x)
def _layernorm(x, axis=-1, eps=1e-5):
    m = x.mean(dim=axis, keepdim=True)
    v = x.var(dim=axis, keepdim=True, unbiased=False)
    return (x - m) / torch.sqrt(v + eps)
def _scatter_add(tgt, idx, src, axis=0):
    return tgt.clone().index_add_(axis, idx, src)
def _segment_sum(src, seg, n):
    out = torch.zeros((n,) + src.shape[1:], dtype=src.dtype)
    return out.index_add_(0, seg, src)
def _pad(x, pw):
    flat = tuple(v for pair in reversed(pw) for v in pair)
    return torch.nn.functional.pad(x, flat)

kernel_name = 'recurrent_scan__mha_block_cached__geglu_ffn__prompt'

def setup_inputs():

    _w = (lambda a: (lambda t: t.to(torch.bfloat16) if t.is_floating_point() else t)(torch.as_tensor(a)))
    def _A_setup():
        B, Sq, D = 1, 2048, 1024
        H, Sk, Dh = 32, 2048, 128
        return {
            "x": _w((lambda *s: torch.randn(*s, dtype=torch.bfloat16) * 0.05)(B, Sq, D)),
            "k_cache": _w((lambda *s: torch.randn(*s, dtype=torch.bfloat16) * 0.8)(B, H, Sk, Dh)),
            "v_cache": _w((lambda *s: torch.randn(*s, dtype=torch.bfloat16) * 0.2)(B, H, Sk, Dh)),
            "wq": _w((lambda *s: torch.randn(*s, dtype=torch.bfloat16) * 0.8)(D, H * Dh) * (D ** -0.5)),
            "wo": _w((lambda *s: torch.randn(*s, dtype=torch.bfloat16) * 0.2)(H * Dh, D) * ((H * Dh) ** -0.5)),
        }
    _A_in = _A_setup()

    def _B_setup():
        B, S, D, F = 1, 2048, 1024, 3584
        return {
            "x": _w((lambda *s: torch.randn(*s, dtype=torch.bfloat16) * 0.05)(B, S, D)),
            "w_gate": _w((lambda *s: torch.randn(*s, dtype=torch.bfloat16) * 0.1)(D, F)),
            "w_up": _w((lambda *s: torch.randn(*s, dtype=torch.bfloat16) * 0.1)(D, F)),
            "w_down": _w((lambda *s: torch.randn(*s, dtype=torch.bfloat16) * 0.1)(F, D)),
        }
    _B_in = _B_setup()

    return {
        "A_x": _A_in["x"],
        "A_k_cache": _A_in["k_cache"],
        "A_v_cache": _A_in["v_cache"],
        "A_wq": _A_in["wq"],
        "A_wo": _A_in["wo"],
        "B_x": _B_in["x"],
        "B_w_gate": _B_in["w_gate"],
        "B_w_up": _B_in["w_up"],
        "B_w_down": _B_in["w_down"],
    }

def reference(A_x, A_k_cache, A_v_cache, A_wq, A_wo, B_x, B_w_gate, B_w_up, B_w_down):
    def _A_ref(x, k_cache, v_cache, wq, wo):
        B, Sq, D = x.shape
        H, Dh = 32, 128
        q = (lambda x, *d: x.permute(*d))((x @ wq).reshape(B, Sq, H, Dh), 0, 2, 1, 3)
        scores = torch.einsum("bhqd,bhkd->bhqk", q, k_cache) * (Dh ** -0.5)
        p = _softmax(scores, axis=-1)
        o = torch.einsum("bhqk,bhkd->bhqd", p, v_cache)
        return (lambda x, *d: x.permute(*d))(o, 0, 2, 1, 3).reshape(B, Sq, H * Dh) @ wo

    def _B_ref(x, w_gate, w_up, w_down):
        return (_gelu(x @ w_gate) * (x @ w_up)) @ w_down

    x = A_x
    xn = _layernorm(x, axis=-1)
    s = _A_ref(xn, A_k_cache, A_v_cache, A_wq, A_wo)
    g = _silu(_B_ref(xn, B_w_gate, B_w_up, B_w_down))
    return x + s * g
```

```python
class Asm:
    def __init__(self):
        self.lines = []
    def __call__(self, s):
        for l in s.strip("\n").split("\n"):
            l = l.strip()
            if l:
                self.lines.append("    " + l)
    def label(self, l):
        self.lines.append(f"{l}:")
    def raw(self, s):
        self.lines.append(s)
    def comment(self, s):
        self.lines.append(f"    ; {s}")
    def text(self):
        return "\n".join(self.lines) + "\n"

def vr(b, n=1):
    return f"v{b}" if n == 1 else f"v[{b}:{b+n-1}]"
def ar(b, n=1):
    return f"a{b}" if n == 1 else f"a[{b}:{b+n-1}]"
def sr(b, n=1):
    return f"s{b}" if n == 1 else f"s[{b}:{b+n-1}]"

def kernel_header(a, name):
    a.raw(f".globl {name}")
    a.raw(".p2align 8")
    a.raw(f".type {name},@function")
    a.label(name)

def kernel_desc(name, vgpr, agpr, sgpr=102):
    if agpr:
        acc = (vgpr + 3) // 4 * 4
        nfv = acc + agpr
    else:
        acc = (vgpr + 3) // 4 * 4
        nfv = vgpr
    return f""".p2align 6
.amdhsa_kernel {name}
  .amdhsa_next_free_vgpr {nfv}
  .amdhsa_next_free_sgpr {sgpr}
  .amdhsa_accum_offset {acc}
  .amdhsa_group_segment_fixed_size 0
  .amdhsa_kernarg_size 96
  .amdhsa_user_sgpr_count 2
  .amdhsa_user_sgpr_kernarg_segment_ptr 1
  .amdhsa_system_sgpr_workgroup_id_x 1
.end_amdhsa_kernel
"""

def srd(a, d, lo, hi, size):
    a(f"s_mov_b32 s{d}, {lo}")
    a(f"s_and_b32 s{d+1}, {hi}, 0xffff")
    a(f"s_mov_b32 s{d+2}, {size}")
    a(f"s_mov_b32 s{d+3}, 0x00020000")

def srd_off(a, d, lo, hi, off, size):
    a(f"s_add_u32 s{d}, {lo}, {off}")
    a(f"s_addc_u32 s{d+1}, {hi}, 0")
    a(f"s_and_b32 s{d+1}, s{d+1}, 0xffff")
    a(f"s_mov_b32 s{d+2}, {size}")
    a(f"s_mov_b32 s{d+3}, 0x00020000")

import struct
def f32(x):
    return "0x%08x" % struct.unpack("<I", struct.pack("<f", x))[0]

WS_XN = 0
WS_H = 4 << 20
WS_O = 20 << 20
WS_EX = 40 << 20
WS_FLAG = 48 << 20
WS_Q = 64 << 20

class Stamps:
    def __init__(self, a, enable, vreg=63):
        self.a = a; self.en = enable; self.v = vreg
    def init(self):
        if not self.en: return
        self.a(f"v_mov_b32 v{self.v}, 0")
        self.a("s_mov_b32 s94, 0")
    def stamp(self):
        if not self.en: return
        a = self.a
        a("s_memtime s[92:93]")
        a("s_mov_b32 s95, m0")
        a("s_mov_b32 m0, s94")
        a("s_waitcnt lgkmcnt(0)")
        a(f"v_writelane_b32 v{self.v}, s92, m0")
        a("s_add_u32 s94, s94, 1")
        a("s_mov_b32 m0, s95")
    def dump(self, dbg_lo, dbg_hi, wg=0):
        if not self.en: return
        a = self.a
        a(f"s_cmp_lg_u32 s2, {wg}")
        a("s_cbranch_scc1 L_stamp_skip")
        srd(a, 96, dbg_lo, dbg_hi, 256)
        a("v_lshlrev_b32 v62, 2, v0")
        a(f"buffer_store_dword v{self.v}, v62, s[96:99], 0 offen")
        a.label("L_stamp_skip")
```

```python
from common import *

def wave_reduce_add(a, v, t):
    a("s_nop 1")
    a(f"v_add_f32_dpp v{t}, v{v}, v{v} quad_perm:[1,0,3,2] row_mask:0xf bank_mask:0xf")
    a("s_nop 1")
    a(f"v_add_f32_dpp v{v}, v{t}, v{t} quad_perm:[2,3,0,1] row_mask:0xf bank_mask:0xf")
    a("s_nop 1")
    a(f"v_add_f32_dpp v{t}, v{v}, v{v} row_half_mirror row_mask:0xf bank_mask:0xf")
    a("s_nop 1")
    a(f"v_add_f32_dpp v{v}, v{t}, v{t} row_mirror row_mask:0xf bank_mask:0xf")
    a(f"v_mov_b32 v{t}, v{v}")
    a("s_nop 1")
    a(f"v_permlane16_swap_b32 v{v}, v{t}")
    a("s_nop 1")
    a(f"v_add_f32 v{v}, v{v}, v{t}")
    a(f"v_mov_b32 v{t}, v{v}")
    a("s_nop 1")
    a(f"v_permlane32_swap_b32 v{v}, v{t}")
    a("s_nop 1")
    a(f"v_add_f32 v{v}, v{v}, v{t}")

def round_bf16(a, v):
    a(f"v_cvt_pk_bf16_f32 v{v}, v{v}, v{v}")
    a(f"v_and_b32 v{v}, 0xffff0000, v{v}")

def gen_ln(a):
    name = "ln_kernel"
    kernel_header(a, name)
    a("s_cmp_ge_u32 s2, 512")
    a("s_cbranch_scc1 L_ln_end")
    a("s_load_dwordx2 s[4:5], s[0:1], 0")
    a("s_load_dwordx2 s[6:7], s[0:1], 88")
    a("v_lshrrev_b32 v1, 6, v0")
    a("v_and_b32 v2, 63, v0")
    a("s_lshl_b32 s3, s2, 13")
    a("v_lshlrev_b32 v1, 11, v1")
    a("v_lshl_add_u32 v1, v2, 4, v1")
    a("v_add_u32 v1, s3, v1")
    a("s_waitcnt lgkmcnt(0)")
    srd(a, 8, "s4", "s5", 2048*1024*2)
    srd_off(a, 12, "s6", "s7", WS_XN, 2048*1024*2)
    a("buffer_load_dwordx4 v[4:7], v1, s[8:11], 0 offen")
    a("buffer_load_dwordx4 v[8:11], v1, s[8:11], 0 offen offset:1024")
    srd_off(a, 16, "s6", "s7", WS_FLAG, 32768)
    a("v_mov_b32 v40, 0")
    a("v_mov_b32 v41, 0")
    a("v_mov_b32 v42, 0")
    a("v_mov_b32 v43, 0")
    a("v_lshlrev_b32 v44, 4, v0")
    a("s_lshl_b32 s3, s2, 12")
    a("buffer_store_dwordx4 v[40:43], v44, s[16:19], s3 offen")
    a("s_waitcnt vmcnt(1)")
    for i in range(8):
        a(f"v_lshlrev_b32 v{16+2*i}, 16, v{4+i}")
        a(f"v_and_b32 v{17+2*i}, 0xffff0000, v{4+i}")
    for i in range(8):
        a(f"v_add_f32 v{32+i}, v{16+2*i}, v{17+2*i}")
    for i in range(4):
        a(f"v_add_f32 v{32+i}, v{32+i}, v{36+i}")
    a("v_add_f32 v32, v32, v34")
    a("v_add_f32 v33, v33, v35")
    a("v_add_f32 v12, v32, v33")
    wave_reduce_add(a, 12, 13)
    a(f"v_mul_f32 v12, {f32(1.0/1024)}, v12")
    for i in range(16):
        a(f"v_sub_f32 v{32+i}, v{16+i}, v12")
    a("v_mul_f32 v14, v32, v32")
    a("v_mul_f32 v15, v33, v33")
    for i in range(2, 16, 2):
        a(f"v_fmac_f32 v14, v{32+i}, v{32+i}")
        a(f"v_fmac_f32 v15, v{33+i}, v{33+i}")
    a("v_add_f32 v14, v14, v15")
    wave_reduce_add(a, 14, 13)
    a(f"v_mul_f32 v14, {f32(1.0/1024)}, v14")
    round_bf16(a, 12)
    round_bf16(a, 14)
    a(f"v_add_f32 v14, {f32(1e-5)}, v14")
    round_bf16(a, 14)
    a("v_sqrt_f32 v14, v14")
    a("s_nop 0")
    round_bf16(a, 14)
    a("v_rcp_f32 v15, v14")
    for i in range(16):
        a(f"v_sub_f32 v{32+i}, v{16+i}, v12")
    for i in range(8):
        a(f"v_cvt_pk_bf16_f32 v{4+i}, v{32+2*i}, v{33+2*i}")
    for i in range(8):
        a(f"v_lshlrev_b32 v{16+2*i}, 16, v{4+i}")
        a(f"v_and_b32 v{17+2*i}, 0xffff0000, v{4+i}")
    for i in range(16):
        a(f"v_mul_f32 v{32+i}, v{16+i}, v15")
    for i in range(16):
        a(f"v_fma_f32 v{16+i}, -v{32+i}, v14, v{16+i}")
    for i in range(16):
        a(f"v_fmac_f32 v{32+i}, v{16+i}, v15")
    for i in range(8):
        a(f"v_cvt_pk_bf16_f32 v{4+i}, v{32+2*i}, v{33+2*i}")
    a("buffer_store_dwordx4 v[4:7], v1, s[12:15], 0 offen")
    a("buffer_store_dwordx4 v[8:11], v1, s[12:15], 0 offen offset:1024")
    a.label("L_ln_end")
    a("s_endpgm")
    return kernel_desc(name, 48, 0, 32), "; @launch kernel=ln_kernel grid=(512,1,1) block=(256,1,1) lds=0"
```

```python
from common import *
import math

XOFF = 0; XSZ = 33280
QOFF = 33280; QSZ = 17408
GOFF = 50688; GSZ = 14336
UOFF = GOFF + GSZ + 128
SS = UOFF + GSZ
assert SS == 79488
KSZ = 16640; VSZ = 17408; RS = KSZ + VSZ
R = 4
LDS_BYTES = 2 * SS

S_XN, S_WQ, S_GU, S_K, S_V, S_H, S_O = 8, 12, 16, 20, 24, 28, 32
sW, sHEAD, sRB = 36, 37, 38
sMX, sMQ, sMG = 39, 40, 41
sKX, sKQ, sKG = 42, 43, 44
sT, sCNT = 45, 46
sMK, sMV = 47, 48
sGK, sGV = 49, 50
sSK, sSV = 51, 52
sRK, sRV = 53, 54
sRET = 56
sTHR = 58
sQD = 88
vLANE = 1
vXr = (4, 5); vQr = (6, 7); vGr = (8, 9)
vXd, vQd, vGd = 10, 11, 12
vHo, vOo = 19, 20
vKr, vVr, vKd, vVd, vKc, vVc = 21, 22, 23, 24, 25, 26
WF = 64; NB = 8
XF = 96
ET = 112
ACCV = 160
SB = (64, 96); PB_ = (128, 144); NEGM = 160; TMP = 192
vL = (208, 209); vLU = (210, 211); vM = 212
AQ = 128; AKF = 192; AVF = 224

CSCALE = (128 ** -0.5) * 1.4426950408889634

def acc(tt, qb):
    if tt < 3: return ('v', ACCV + (2*tt + qb) * 16)
    if tt < 7: return ('a', (2*(tt-3) + qb) * 16)
    return ('a', 128 + (2*(tt-7) + qb) * 16)
def rr(f, b, n): return f"{f}[{b}:{b+n-1}]"

class LdsTrack:
    def __init__(self): self.issued = []; self.done = 0
    def issue(self, tag): self.issued.append(tag)
    def need(self, a, tags):
        idx = max((len(self.issued) - 1 - self.issued[::-1].index(t)) for t in tags) + 1
        if idx <= self.done: return
        n = len(self.issued) - idx
        n = min(n, 15)
        a(f"s_waitcnt lgkmcnt({n})")
        self.done = len(self.issued) - n
    def all_done(self): self.done = len(self.issued)

def w_read(buf, n):
    s, tt = divmod(n, 11)
    fb = WF + 4 * (n % NB)
    return s, tt

def gen_k2(a, dbg_q=False, stamps=False):
    name = "attn_kernel"
    kernel_header(a, name)
    global ST
    ST = Stamps(a, stamps)
    a("s_cmp_ge_u32 s2, 256")
    a("s_cbranch_scc1 L_k2_end")
    a("s_load_dwordx16 s[64:79], s[0:1], 0")
    a("s_load_dwordx8 s[80:87], s[0:1], 64")
    a("v_lshrrev_b32 v2, 6, v0")
    a(f"v_and_b32 v{vLANE}, 63, v0")
    a("s_nop 0")
    a(f"v_readfirstlane_b32 s{sW}, v2")
    a("s_and_b32 s3, s2, 7")
    a("s_lshl_b32 s3, s3, 2")
    a("s_lshr_b32 s4, s2, 3")
    a("s_and_b32 s4, s4, 3")
    a(f"s_add_u32 s{sHEAD}, s3, s4")
    a(f"s_lshr_b32 s{sRB}, s2, 5")
    a("s_waitcnt lgkmcnt(0)")
    a(f"s_lshl_b32 s3, s{sRB}, 19")
    a(f"s_add_u32 s3, s3, {WS_XN}")
    srd_off(a, S_XN, "s86", "s87", "s3", 256*2048)
    srd(a, S_WQ, "s70", "s71", 1024*4096*2)
    a(f"s_cmp_lt_u32 s{sW}, 2")
    a("s_cselect_b32 s4, s76, s78")
    a("s_cselect_b32 s5, s77, s79")
    srd(a, S_GU, "s4", "s5", 1024*3584*2)
    a(f"s_lshl_b32 s3, s{sHEAD}, 19")
    srd_off(a, S_K, "s66", "s67", "s3", 524288)
    srd_off(a, S_V, "s68", "s69", "s3", 524288)
    a(f"s_mul_i32 s3, s{sRB}, {256*7168}")
    a(f"s_add_u32 s3, s3, {WS_H}")
    srd_off(a, S_H, "s86", "s87", "s3", 256*7168)
    a(f"s_lshl_b32 s3, s{sRB}, 21")
    a(f"s_add_u32 s3, s3, {WS_O}")
    srd_off(a, S_O, "s86", "s87", "s3", 256*8192)
    if dbg_q:
        a(f"s_lshl_b32 s3, s{sRB}, 21")
        a(f"s_add_u32 s3, s3, {WS_Q}")
        srd_off(a, sQD, "s86", "s87", "s3", 256*8192)
    a(f"s_mul_i32 s{sMX}, s{sW}, 8320")
    a(f"s_mul_i32 s{sMQ}, s{sW}, 4352")
    a(f"s_add_u32 s{sMQ}, s{sMQ}, {QOFF}")
    a(f"s_and_b32 s3, s{sW}, 1")
    a(f"s_mul_i32 s3, s3, 7168")
    a(f"s_cmp_lt_u32 s{sW}, 2")
    a(f"s_mov_b32 s5, {UOFF}")
    a(f"s_cselect_b32 s4, {GOFF}, s5")
    a(f"s_add_u32 s{sMG}, s3, s4")
    a(f"s_mov_b32 s{sKX}, 0")
    a(f"s_mov_b32 s{sKQ}, 0")
    a(f"s_mov_b32 s{sKG}, 0")
    L = f"v{vLANE}"
    ST.init()
    ST.stamp()
    a(f"v_lshrrev_b32 v2, 3, {L}")
    a(f"v_lshlrev_b32 v2, 14, v2")
    a(f"v_and_b32 v3, 7, {L}")
    a(f"v_lshl_add_u32 v2, v3, 4, v2")
    a(f"s_lshl_b32 s3, s{sW}, 17")
    a(f"v_add_u32 v{vXd}, s3, v2")
    a(f"v_lshrrev_b32 v2, 4, {L}")
    a(f"v_lshlrev_b32 v2, 15, v2")
    a(f"v_and_b32 v3, 15, {L}")
    a(f"v_lshl_add_u32 v2, v3, 4, v2")
    a(f"s_lshl_b32 s3, s{sW}, 17")
    a(f"s_lshl_b32 s4, s{sHEAD}, 8")
    a(f"s_add_u32 s3, s3, s4")
    a(f"v_add_u32 v{vQd}, s3, v2")
    a(f"s_and_b32 s3, s{sW}, 1")
    a(f"s_mul_i32 s3, s3, {32*7168}")
    a(f"s_mul_i32 s4, s{sHEAD}, 224")
    a(f"s_add_u32 s3, s3, s4")
    a(f"s_mov_b32 s4, {7168 - 224}")
    for i in range(7):
        a(f"v_add_u32 v2, {64*i}, {L}")
        a(f"v_mul_u32_u24 v3, 4682, v2")
        a(f"v_lshrrev_b32 v3, 16, v3")
        a(f"v_mul_lo_u32 v3, v3, s4")
        a(f"v_lshl_add_u32 v3, v2, 4, v3")
        a(f"v_add_u32 v{vGd+i}, s3, v3")
    for n in range(448): assert (n*4682) >> 16 == n // 14

    def dma_stage(buf):
        g = []
        for c in range(8):
            g.append([f"s_add_u32 m0, s{sMX}, {buf*SS + c*1040}",
                      f"s_add_u32 s{sT}, s{sKX}, {c*2048}",
                      f"buffer_load_dwordx4 v{vXd}, s[{S_XN}:{S_XN+3}], s{sT} offen lds"])
        for c in range(4):
            g.append([f"s_add_u32 m0, s{sMQ}, {buf*SS + c*1088}",
                      f"s_add_u32 s{sT}, s{sKQ}, {c*8192}",
                      f"buffer_load_dwordx4 v{vQd}, s[{S_WQ}:{S_WQ+3}], s{sT} offen lds"])
        for i in range(7):
            g.append([f"s_add_u32 m0, s{sMG}, {buf*SS + i*1024}",
                      "s_nop 0",
                      f"buffer_load_dwordx4 v{vGd+i}, s[{S_GU}:{S_GU+3}], s{sKG} offen lds"])
        g.append([f"s_add_u32 s{sKX}, s{sKX}, 128",
                  f"s_add_u32 s{sKQ}, s{sKQ}, {64*8192}",
                  f"s_add_u32 s{sKG}, s{sKG}, {64*7168}"])
        return g
    for buf in (0, 1):
        for grp in dma_stage(buf):
            for s_ in grp: a(s_)
    a(f"v_and_b32 v2, 7, {L}")
    a(f"v_mul_u32_u24 v2, 1040, v2")
    a(f"v_bfe_u32 v3, {L}, 3, 2")
    a(f"v_lshl_add_u32 v2, v3, 7, v2")
    a(f"v_lshrrev_b32 v3, 5, {L}")
    a(f"v_lshl_add_u32 v2, v3, 4, v2")
    a(f"v_add_u32 v{vXr[0]}, s{sMX}, v2")
    a(f"v_add_u32 v{vXr[1]}, {SS}, v{vXr[0]}")
    a(f"v_bfe_u32 v27, {L}, 2, 2")
    a(f"v_and_b32 v28, 3, {L}")
    a(f"v_bfe_u32 v29, {L}, 4, 1")
    a(f"v_lshrrev_b32 v30, 5, {L}")
    a(f"v_and_b32 v31, 1, v28")
    a(f"v_lshrrev_b32 v32, 1, v28")
    a(f"v_mul_u32_u24 v2, 1088, v27")
    a(f"v_lshl_add_u32 v2, v30, 9, v2")
    a(f"v_lshl_add_u32 v2, v29, 5, v2")
    a(f"v_lshl_add_u32 v2, v31, 4, v2")
    a(f"v_lshl_add_u32 v2, v32, 3, v2")
    a(f"v_add_u32 v{vQr[0]}, {QOFF}, v2")
    a(f"v_add_u32 v{vQr[1]}, {SS}, v{vQr[0]}")
    a(f"v_lshl_add_u32 v2, v30, 3, v27")
    a(f"v_mul_u32_u24 v2, 224, v2")
    a(f"v_mul_u32_u24 v3, {UOFF-GOFF}, v32")
    a(f"v_add_u32 v2, v2, v3")
    a(f"v_lshl_add_u32 v2, v31, 4, v2")
    a(f"v_lshl_add_u32 v2, v29, 3, v2")
    a(f"v_add_u32 v{vGr[0]}, {GOFF}, v2")
    a(f"v_add_u32 v{vGr[1]}, {SS}, v{vGr[0]}")
    a(f"v_and_b32 v2, 31, {L}")
    a(f"s_lshl_b32 s3, s{sW}, 6")
    a(f"v_add_u32 v2, s3, v2")
    a(f"v_mul_u32_u24 v3, 7168, v2")
    a(f"v_lshl_add_u32 v3, v30, 4, v3")
    a(f"s_mul_i32 s3, s{sHEAD}, 224")
    a(f"v_add_u32 v{vHo}, s3, v3")
    a(f"v_lshlrev_b32 v3, 13, v2")
    a(f"v_lshl_add_u32 v3, v30, 5, v3")
    a(f"s_lshl_b32 s3, s{sHEAD}, 8")
    a(f"v_add_u32 v{vOo}, s3, v3")
    a(f"v_and_b32 v2, 15, {L}")
    a(f"v_mul_u32_u24 v2, 1040, v2")
    a(f"v_lshl_add_u32 v2, v29, 8, v2")
    a(f"v_lshl_add_u32 v{vKr}, v30, 4, v2")
    a(f"v_mul_u32_u24 v2, 1088, v27")
    a(f"v_lshl_add_u32 v2, v30, 8, v2")
    a(f"v_lshl_add_u32 v2, v31, 5, v2")
    a(f"v_lshl_add_u32 v2, v29, 4, v2")
    a(f"v_lshl_add_u32 v2, v32, 3, v2")
    a(f"v_add_u32 v{vVr}, {KSZ}, v2")
    a(f"v_lshrrev_b32 v2, 4, {L}")
    a(f"v_and_b32 v3, 15, {L}")
    a(f"v_lshlrev_b32 v3, 4, v3")
    a(f"v_lshl_add_u32 v33, v2, 12, v3")
    a(f"s_lshl_b32 s3, s{sW}, 10")
    a(f"v_add_u32 v{vKd}, s3, v33")
    a(f"v_lshl_add_u32 v33, v2, 10, v3")
    a(f"s_lshl_b32 s3, s{sW}, 12")
    a(f"v_add_u32 v{vVd}, s3, v33")
    a(f"s_mul_i32 s{sMK}, s{sW}, {4*1040}")
    a(f"s_mul_i32 s{sMV}, s{sW}, {4*1088}")
    a(f"s_add_u32 s{sMV}, s{sMV}, {KSZ}")
    for i in range(96): a(f"v_mov_b32 v{ACCV+i}, 0")
    for i in range(256): a(f"v_accvgpr_write_b32 a{i}, 0")

    PD = 7; PBAR = 39
    def wread_instrs(buf, n, gn):
        s, tt = divmod(n, 11)
        fb = WF + 4 * (gn % NB)
        out = []
        for u in range(2):
            if tt < 7:
                out.append(f"ds_read_b64_tr_b16 v[{fb+2*u}:{fb+2*u+1}], v{vGr[buf]} offset:{(16*s+4*u)*224 + tt*32}")
            else:
                out.append(f"ds_read_b64_tr_b16 v[{fb+2*u}:{fb+2*u+1}], v{vQr[buf]} offset:{s*4352 + u*256 + (tt-7)*64}")
        return out
    def xread_instrs(buf, s):
        xs = XF + 8 * (s & 1)
        return [f"ds_read_b128 v[{xs+4*qb}:{xs+4*qb+3}], v{vXr[buf]} offset:{qb*512 + s*32}" for qb in range(2)]

    def carried(buf, gbase):
        seq = []
        for i, ins in enumerate(xread_instrs(buf, 0)): seq.append((ins, ('x', gbase, 0) if i == 1 else ('x_', gbase, 0)))
        for n in range(PD):
            for i, ins in enumerate(wread_instrs(buf, n, gbase + n)): seq.append((ins, ('w', gbase + n) if i == 1 else ('w_', gbase+n)))
        return seq

    def stage(buf, gbase, trk, post_barrier_dma, prefetch_next, late_dma, vm_wait="vmcnt(0)"):
        fill = [[[], []] for _ in range(44)]
        for n in range(PD, 44):
            ins = wread_instrs(buf, n, gbase + n)
            p = n - PD
            fill[p][0].append((ins[0], ('w_', gbase+n)))
            fill[p][1].append((ins[1], ('w', gbase+n)))
        for s in range(1, 4):
            ins = xread_instrs(buf, s)
            p = 11 * (s - 1) + 3
            fill[p][0].append((ins[0], ('x_', gbase, s)))
            fill[p][1].append((ins[1], ('x', gbase, s)))
        p = 0
        for grp in late_dma:
            fill[p][0].extend((i, None) for i in grp[:2]); fill[p][1].extend((i, None) for i in grp[2:])
            p += 1
        if prefetch_next:
            seq = carried(1 - buf, gbase + 44)
            slots = [(p, h) for p in range(PBAR, 44) for h in range(2)]
            k = 0
            for si, (p, h) in enumerate(slots):
                cnt = 2 if si < 6 else 1
                for _ in range(cnt):
                    fill[p][h].append(seq[k]); k += 1
            assert k == len(seq)
        rest = list(post_barrier_dma)
        for p in range(PBAR, 44):
            if rest:
                grp = rest.pop(0)
                fill[p][0].extend((i, None) for i in grp[:2]); fill[p][1].extend((i, None) for i in grp[2:])
        for n in range(44):
            s, tt = divmod(n, 11)
            if n == PBAR:
                ST.stamp()
                a(f"s_waitcnt {vm_wait} lgkmcnt(0)")
                trk.all_done()
                ST.stamp()
                a("s_barrier")
                ST.stamp()
            fb = WF + 4 * ((gbase + n) % NB)
            xs = XF + 8 * (s & 1)
            trk.need(a, [('w', gbase+n), ('x', gbase, s)])
            for qb in range(2):
                f, b = acc(tt, qb)
                a(f"v_mfma_f32_32x32x16_bf16 {rr(f,b,16)}, v[{fb}:{fb+3}], v[{xs+4*qb}:{xs+4*qb+3}], {rr(f,b,16)}")
                for ins, tag in fill[n][qb]:
                    a(ins)
                    if tag: trk.issue(tag)
        return rest

    ST.stamp()
    a("s_waitcnt vmcnt(19)")
    a("s_barrier")
    ST.stamp()
    trk = LdsTrack()
    for ins, tag in carried(0, 0):
        a(ins); trk.issue(tag)
    a(f"s_mov_b32 s{sCNT}, 7")
    def run_pair(first, last):
        nonlocal trk
        pass
    rest = stage(0, 0, trk, dma_stage(0), True, [])
    a.raw(".p2align 6")
    a.label("L_k2_gemm_loop")
    trk2 = LdsTrack()
    for ins, tag in carried(1, 44): trk2.issue(tag)
    rest1 = stage(1, 44, trk2, dma_stage(1), True, rest)
    rest0 = stage(0, 88, trk2, dma_stage(0), True, rest1)
    assert len(rest0) == len(rest)
    a(f"s_sub_u32 s{sCNT}, s{sCNT}, 1")
    a(f"s_cmp_lg_u32 s{sCNT}, 1")
    a("s_cbranch_scc1 L_k2_gemm_loop")
    trk3 = LdsTrack()
    for ins, tag in carried(1, 44): trk3.issue(tag)
    rest1 = stage(1, 44, trk3, dma_stage(1), True, rest0)

    def kv_dma(kind, tile, slot):
        g = []
        for cc in range(4):
            if kind == 'K':
                g.append([f"s_add_u32 m0, s{sMK}, {slot*RS + cc*784}", f"s_mov_b32 s{sT}, {tile*16384}",
                          f"buffer_load_dwordx4 v{vKd}, s[{S_K}:{S_K+3}], s{sT} offen offset:{cc*256} lds"])
            else:
                g.append([f"s_add_u32 m0, s{sMV}, {slot*RS + cc*832}", f"s_mov_b32 s{sT}, {tile*16384}",
                          f"buffer_load_dwordx4 v{vVd}, s[{S_V}:{S_V+3}], s{sT} offen offset:{cc*256} lds"])
        return g
    kv1 = kv_dma('K', 0, 0) + kv_dma('K', 1, 1) + kv_dma('V', 0, 0)
    rest0 = stage(0, 88, trk3, kv1, True, rest1)
    kv2 = kv_dma('K', 2, 2) + kv_dma('V', 1, 1) + kv_dma('K', 3, 3) + kv_dma('V', 2, 2)
    rest2 = stage(1, 132, trk3, kv2, False, rest0, vm_wait="vmcnt(63)")
    for grp in rest2:
        for s_ in grp: a(s_)

    ST.stamp()
    a("s_nop 15")
    a("s_nop 7")
    a(f"s_mov_b32 s3, {f32(CSCALE)}")
    for T in range(4):
        for i in range(32):
            a(f"v_accvgpr_read_b32 v{ET+i}, a{128 + 32*T + i}")
        for i in range(32):
            a(f"v_mul_f32 v{ET+i}, s3, v{ET+i}")
        for qb in range(2):
            for tp in range(2):
                for i in range(4):
                    src = ET + 16*qb + 8*tp + 2*i
                    a(f"v_cvt_pk_bf16_f32 v{ET+32 + (tp*2+qb)*4 + i}, v{src}, v{src+1}")
        for i in range(16):
            a(f"v_accvgpr_write_b32 a{AQ + 16*T + i}, v{ET+32+i}")
        if dbg_q:
            for qb in range(2):
                for tp in range(2):
                    b = ET + 32 + (tp*2+qb)*4
                    a(f"v_lshrrev_b32 v2, 5, {L}")
                    a(f"v_lshlrev_b32 v2, 4, v2")
                    a(f"v_sub_u32 v2, v{vOo}, v2")
                    a(f"s_mov_b32 s4, {qb*32*8192}")
                    a(f"buffer_store_dwordx4 v[{b}:{b+3}], v2, s[{sQD}:{sQD+3}], s4 offen offset:{T*64 + tp*32}")
            a("s_nop 1")
    C1 = -2.0 * 1.4426950408889634 * 0.7978845608028654
    C2 = C1 * 0.044715
    a(f"s_mov_b32 s3, {f32(C2)}")
    a(f"v_mov_b32 v2, {f32(C1)}")
    a(f"s_mov_b32 s4, {32*7168}")
    for tt in range(7):
        for qb in range(2):
            f, b = acc(tt, qb)
            tb = ET + 24 * ((tt*2+qb) & 1)
            if f == 'a':
                for i in range(16): a(f"v_accvgpr_read_b32 v{tb+i}, a{b+i}")
                sb = tb
            else:
                sb = b
            wk = tb + 16
            gi = [sb + i for i in (0,1,2,3,8,9,10,11)]
            ui = [sb + i for i in (4,5,6,7,12,13,14,15)]
            for i in range(8): a(f"v_mul_f32 v{wk+i}, v{gi[i]}, v{gi[i]}")
            for i in range(8): a(f"v_fma_f32 v{wk+i}, v{wk+i}, s3, v2")
            for i in range(8): a(f"v_mul_f32 v{wk+i}, v{wk+i}, v{gi[i]}")
            for i in range(8): a(f"v_exp_f32 v{wk+i}, v{wk+i}")
            for i in range(8): a(f"v_add_f32 v{wk+i}, 1.0, v{wk+i}")
            for i in range(8): a(f"v_rcp_f32 v{wk+i}, v{wk+i}")
            for i in range(8): a(f"v_mul_f32 v{gi[i]}, v{gi[i]}, v{ui[i]}")
            for i in range(8): a(f"v_mul_f32 v{wk+i}, v{wk+i}, v{gi[i]}")
            for i in range(4): a(f"v_cvt_pk_bf16_f32 v{wk+i}, v{wk+2*i}, v{wk+2*i+1}")
            so = "s4" if qb else "0"
            a(f"buffer_store_dwordx4 v[{wk}:{wk+3}], v{vHo}, s[{S_H}:{S_H+3}], {so} offen offset:{tt*32}")
    return name

def gen_k2_end(a, name):
    ST.stamp()
    ST.dump("s84", "s85")
    a.label("L_k2_end")
    a("s_endpgm")
    return kernel_desc(name, 256, 256, 102), f"; @launch kernel={name} grid=(256,1,1) block=(256,1,1) lds={LDS_BYTES}"
```

```python
from common import *
import k2
from k2 import *

THR = 2.0 ** 30

def kf(t): return f"a[{AKF+4*t}:{AKF+4*t+3}]"
def vf(u, db): return f"a[{AVF+4*(4*u+db)}:{AVF+4*(4*u+db)+3}]"
def qf(t, qb): return f"a[{AQ+(2*t+qb)*4}:{AQ+(2*t+qb)*4+3}]"
def sreg(buf, qb): return SB[buf] + 16*qb
def preg(buf, u, qb): return PB_[buf] + (2*u+qb)*4
def oacc(db, qb): return f"a[{(2*db+qb)*16}:{(2*db+qb)*16+15}]"

def k_reads(kb):
    return [f"ds_read_b128 {kf(t)}, v{vKc} offset:{kb*512 + t*32}" for t in range(8)]
def v_reads(kb):
    out = []
    for u in range(2):
        for db in range(4):
            b = AVF + 4*(4*u+db)
            for uu in range(2):
                out.append(f"ds_read_b64_tr_b16 a[{b+2*uu}:{b+2*uu+1}], v{vVc} offset:{(2*kb+u)*4352 + uu*512 + db*64}")
    return out
def qk_mfmas(buf, czero=False):
    out = []
    for t in range(8):
        for qb in range(2):
            d = sreg(buf, qb)
            if t == 0: c = "0" if czero else f"v[{NEGM+16*qb}:{NEGM+16*qb+15}]"
            else: c = f"v[{d}:{d+15}]"
            out.append(f"v_mfma_f32_32x32x16_bf16 v[{d}:{d+15}], {kf(t)}, {qf(t,qb)}, {c}")
    return out
def pv_mfmas(buf):
    out = []
    for u in range(2):
        for db in range(4):
            for qb in range(2):
                p = preg(buf, u, qb)
                out.append(f"v_mfma_f32_32x32x16_bf16 {oacc(db,qb)}, {vf(u,db)}, v[{p}:{p+3}], {oacc(db,qb)}")
    return out

NT = 8
def sm_ops(buf):
    exps = []; post = []
    order = []
    for jp in range(8):
        for qb in range(2):
            order.append((qb, 2*jp)); order.append((qb, 2*jp+1))
    for e, (qb, j) in enumerate(order):
        t = TMP + (e % NT)
        exps.append(f"v_exp_f32 v{t}, v{sreg(buf,qb)+j}")
        ops = []
        if j == 0:
            pass
        elif j == 1:
            ops.append(f"v_add_f32 v{vLU[qb]}, v{TMP+((e-1)%NT)}, v{t}")
        else:
            ops.append(f"v_add_f32 v{vLU[qb]}, v{vLU[qb]}, v{t}")
        if j & 1:
            u = j >> 3
            ops.append(f"v_cvt_pk_bf16_f32 v{preg(buf,u,qb) + ((j&7)>>1)}, v{TMP+((e-1)%NT)}, v{t}")
        post.append(ops)
    return exps, post

def check_ops(lbl):
    return [f"v_max_f32 v{vM}, v{vLU[0]}, v{vLU[1]}",
            f"v_cmp_nge_f32 vcc, s{sTHR}, v{vM}",
            f"s_cbranch_vccz {lbl}_skip",
            f"s_call_b64 s[{sRET}:{sRET+1}], {lbl.split('@')[0]}",
            f"{lbl}_skip:",
            f"v_add_f32 v{vL[0]}, v{vL[0]}, v{vLU[0]}",
            f"v_add_f32 v{vL[1]}, v{vL[1]}, v{vLU[1]}"]

uid = [0]
def unit(a, par, qk=True, sm=True, kread=True, barrier=False, dma=(), extra_qk=(), extra_pv=()):
    M = (qk_mfmas(par) if qk else []) + pv_mfmas(par)
    nq = 16 if qk else 0
    G = [[] for _ in M]
    pre = []
    vr_ = v_reads(par)
    if qk:
        pat = [2,1,1,2,1,1,2,1,1,2,1,1]
        k = 0
        for g, c in enumerate(pat):
            for _ in range(c): G[g].append(vr_[k]); k += 1
        for i, x in enumerate(extra_qk): G[12 + i].append(x)
    else:
        pre += vr_
        pre += list(extra_qk)
    if kread:
        kr = k_reads(1 - par)
        for i, x in enumerate(kr): G[nq + i + (i // 2) * 0].append(x)
    for i, grp in enumerate(dma):
        G[nq + 1 + i].extend(grp)
    for i, x in enumerate(extra_pv): G[nq + 10 + i].append(x)
    tail = []
    if sm:
        exps, post = sm_ops(1 - par)
        n = len(M)
        for e in range(32):
            g = e * (n - 2) // 32
            G[g].insert(0, exps[e]) if not any(x.startswith("v_exp") for x in G[g]) else G[g].append(exps[e])
            gp = g + 1 if n > 16 else g + 1
            G[min(gp, n - 1)].extend(post[e]) if False else None
        for e in range(32):
            g = e * (n - 2) // 32 + 1
            G[g].extend(post[e])
        uid[0] += 1
        lbl = f"L_rare{1-par}@{uid[0]}".replace("@", "_")
        ck = check_ops(f"L_rare{1-par}@{uid[0]}")
        tail = [x.replace("@", "_") for x in ck]
    for x in pre: a(x)
    for i, m in enumerate(M):
        if i == 0 and qk:
            a("s_waitcnt lgkmcnt(0)")
        if i == nq:
            if barrier:
                a(f"s_waitcnt vmcnt({8*(R-2)}) lgkmcnt(0)")
                a("s_barrier")
            else:
                a("s_waitcnt lgkmcnt(0)")
        a(m)
        for x in G[i]: a(x)
    for x in tail:
        if x.endswith(":"): a.label(x[:-1])
        else: a(x)

def dma_groups():
    g = []
    for cc in range(4):
        g.append([f"s_add_u32 m0, s{sSK}, {cc*784}", "s_nop 0",
                  f"buffer_load_dwordx4 v{vKd}, s[{S_K}:{S_K+3}], s{sGK} offen offset:{cc*256} lds"])
    for cc in range(4):
        g.append([f"s_add_u32 m0, s{sSV}, {cc*832}", "s_nop 0",
                  f"buffer_load_dwordx4 v{vVd}, s[{S_V}:{S_V+3}], s{sGV} offen offset:{cc*256} lds"])
    return g

def adv(s, base_s=None):
    pass

def rowmax(a, buf, dst0, dst1):
    for qb, d in ((0, dst0), (1, dst1)):
        s = sreg(buf, qb)
        a(f"v_max3_f32 v{d}, v{s}, v{s+1}, v{s+2}")
        for j in range(3, 15, 2):
            a(f"v_max3_f32 v{d}, v{d}, v{s+j}, v{s+j+1}")
        a(f"v_max_f32 v{d}, v{d}, v{s+15}")
    a("s_nop 1")
    a(f"v_permlane32_swap_b32 v{dst0}, v{dst1}")
    a("s_nop 1")
    a(f"v_max_f32 v{dst0}, v{dst0}, v{dst1}")
    a(f"v_mov_b32 v{dst1}, v{dst0}")
    a("s_nop 1")
    a(f"v_permlane32_swap_b32 v{dst0}, v{dst1}")
    a("s_nop 1")

def sm_plain(a, buf):
    exps, post = sm_ops(buf)
    for e in range(32):
        a(exps[e])
        if e >= 2:
            for x in post[e-2]: a(x)
    a("s_nop 0")
    for e in (30, 31):
        for x in post[e]: a(x)

def gen_attn(a):
    ST = k2.ST
    ST.stamp()
    a(f"s_mov_b32 s{sTHR}, {f32(THR)}")
    a(f"v_mov_b32 v{vKc}, v{vKr}")
    a(f"v_mov_b32 v{vVc}, v{vVr}")
    a("s_waitcnt vmcnt(14)")
    a("s_barrier")
    ST.stamp()
    for x in k_reads(0): a(x)
    a("s_waitcnt lgkmcnt(0)")
    z = 0
    M = qk_mfmas(0, czero=True)
    kr1 = k_reads(1)
    for i, m in enumerate(M):
        a(m)
        for _ in range(4): a(f"v_accvgpr_write_b32 a{z}, 0"); z += 1
        if i % 2 == 1: a(kr1[i // 2])
    a("s_waitcnt lgkmcnt(0)")
    a("s_barrier")
    a(f"s_mov_b32 s{sGK}, {4*16384}")
    a(f"s_mov_b32 s{sGV}, {3*16384}")
    a(f"s_mov_b32 s{sSK}, s{sMK}")
    a(f"s_add_u32 s{sSV}, s{sMV}, {3*RS}")
    dg = dma_groups()
    a(f"v_add_u32 v{vKc}, {RS}, v{vKr}")
    M = qk_mfmas(1, czero=True)
    kr0 = k_reads(0)
    for i, m in enumerate(M):
        a(m)
        for _ in range(4): a(f"v_accvgpr_write_b32 a{z}, 0"); z += 1
        if i % 2 == 1: a(kr0[i // 2])
        if i < 8:
            for x in dg[i]: a(x)
    assert z == 128
    a(f"s_mov_b32 s{sGK}, {5*16384}")
    a(f"s_mov_b32 s{sGV}, {4*16384}")
    a(f"s_add_u32 s{sSK}, s{sMK}, {RS}")
    a(f"s_mov_b32 s{sSV}, s{sMV}")
    a(f"s_mov_b32 s{sRK}, {2*RS}")
    a(f"s_mov_b32 s{sRV}, {RS}")
    d0, d1 = vM + 1, vM + 2
    rowmax(a, 0, d0, d1)
    a("s_nop 7")
    for qb, d in ((0, d0), (1, d1)):
        for j in range(16):
            a(f"v_sub_f32 v{NEGM+16*qb+j}, 0, v{d}")
            a(f"v_sub_f32 v{sreg(0,qb)+j}, v{sreg(0,qb)+j}, v{d}")
            a(f"v_sub_f32 v{sreg(1,qb)+j}, v{sreg(1,qb)+j}, v{d}")
    sm_plain(a, 0)
    a(f"v_mov_b32 v{vL[0]}, v{vLU[0]}")
    a(f"v_mov_b32 v{vL[1]}, v{vLU[1]}")
    a(f"s_mov_b32 s{sCNT}, 31")
    ST.stamp()
    a.raw(".p2align 6")
    a.label("L_attn_loop")
    def ring_adv(s, lim_extra):
        if lim_extra is None:
            return [f"s_add_u32 s{s}, s{s}, {RS}", f"s_cmp_ge_u32 s{s}, {R*RS}", f"s_cselect_b32 s{s}, 0, s{s}"]
        return [f"s_add_u32 s{s}, s{s}, {RS}", f"s_cmp_ge_u32 s{s}, {R*RS}", f"s_cselect_b32 s{s}, s{lim_extra}, s{s}"]
    updK = [f"v_add_u32 v{vKc}, s{sRK}, v{vKr}"] + ring_adv(sRK, None)
    updV = [f"v_add_u32 v{vVc}, s{sRV}, v{vVr}"] + ring_adv(sRV, None)
    post_dma = ring_adv(sSK, sMK) + ring_adv(sSV, sMV) + [f"s_add_u32 s{sGK}, s{sGK}, 16384", f"s_add_u32 s{sGV}, s{sGV}, 16384"]
    unit(a, 0, extra_pv=updK)
    unit(a, 1, barrier=True, dma=dma_groups(), extra_qk=updV, extra_pv=[])
    for x in post_dma: a(x)
    a(f"s_sub_u32 s{sCNT}, s{sCNT}, 1")
    a(f"s_cmp_lg_u32 s{sCNT}, 0")
    a("s_cbranch_scc1 L_attn_loop")
    ST.stamp()
    unit(a, 0, qk=False, kread=False)
    unit(a, 1, qk=False, sm=False, kread=False)
    ST.stamp()
    a(f"v_mov_b32 v{vM}, v{vL[0]}")
    a(f"v_mov_b32 v{vM+1}, v{vL[1]}")
    a("s_nop 1")
    a(f"v_permlane32_swap_b32 v{vM}, v{vM+1}")
    a("s_nop 1")
    a(f"v_add_f32 v{vM}, v{vM}, v{vM+1}")
    a(f"v_rcp_f32 v{vM}, v{vM}")
    a("s_nop 0")
    a(f"v_mov_b32 v{vM+1}, v{vM}")
    a("s_nop 1")
    a(f"v_permlane32_swap_b32 v{vM}, v{vM+1}")
    a("s_nop 15")
    a(f"s_mov_b32 s4, {32*8192}")
    for db in range(4):
        for qb in range(2):
            b = (2*db+qb)*16
            tb = 64 + 24 * ((2*db+qb) & 1)
            for j in range(16): a(f"v_accvgpr_read_b32 v{tb+j}, a{b+j}")
            for j in range(16): a(f"v_mul_f32 v{tb+j}, v{tb+j}, v{vM+qb}")
            for j in range(8): a(f"v_cvt_pk_bf16_f32 v{tb+16+j}, v{tb+2*j}, v{tb+2*j+1}")
            so = "s4" if qb else "0"
            a(f"buffer_store_dwordx4 v[{tb+16}:{tb+19}], v{vOo}, s[{S_O}:{S_O+3}], {so} offen offset:{db*64}")
            a(f"buffer_store_dwordx4 v[{tb+20}:{tb+23}], v{vOo}, s[{S_O}:{S_O+3}], {so} offen offset:{db*64+16}")

def gen_attn_rare(a):
    for x in range(2):
        a.label(f"L_rare{x}")
        a("s_nop 15")
        a("s_nop 7")
        d0, d1 = vM + 1, vM + 2
        rowmax(a, x, d0, d1)
        a(f"v_max_f32 v{d0}, 0, v{d0}")
        a(f"v_max_f32 v{d1}, 0, v{d1}")
        al0, al1 = vM + 3, vM + 4
        a(f"v_exp_f32 v{al0}, -v{d0}")
        a(f"v_exp_f32 v{al1}, -v{d1}")
        a("s_nop 0")
        a(f"v_mul_f32 v{vL[0]}, v{vL[0]}, v{al0}")
        a(f"v_mul_f32 v{vL[1]}, v{vL[1]}, v{al1}")
        for db in range(4):
            for qb in range(2):
                b = (2*db+qb)*16
                for j0 in range(0, 16, 8):
                    for j in range(8): a(f"v_accvgpr_read_b32 v{TMP+j}, a{b+j0+j}")
                    for j in range(8): a(f"v_mul_f32 v{TMP+j}, v{TMP+j}, v{(al0,al1)[qb]}")
                    for j in range(8): a(f"v_accvgpr_write_b32 a{b+j0+j}, v{TMP+j}")
        for qb, d in ((0, d0), (1, d1)):
            for j in range(16):
                a(f"v_sub_f32 v{NEGM+16*qb+j}, v{NEGM+16*qb+j}, v{d}")
                a(f"v_sub_f32 v{sreg(0,qb)+j}, v{sreg(0,qb)+j}, v{d}")
                a(f"v_sub_f32 v{sreg(1,qb)+j}, v{sreg(1,qb)+j}, v{d}")
        sm_plain(a, x)
        a("s_nop 3")
        a(f"s_setpc_b64 s[{sRET}:{sRET+1}]")
```

```python
from common import *
from k2 import LdsTrack

ASZ = 16640; WSZ = 17408; RS = ASZ + WSZ; R = 4
LDS_BYTES = R * RS + 64
S_A, S_W, S_X, S_OUT, S_EX, S_FL = 8, 12, 16, 20, 24, 28
sW, sROLE, sMI, sNI, sPAIR = 36, 37, 38, 39, 40
sMA, sMW = 41, 42
sKA, sKW = 43, 44
sT, sCNT, sTK = 45, 46, 47
vLANE = 1
vAr = (4, 5); vWr = (6, 7)
vAd, vWd, vXo, vEx = 8, 9, 10, 11
vTK = 12
AF = 64
WF = 96
XR = 128
PR = 160
OW = 192
T0 = 16
def acc(nt, mt): return (2*nt + mt) * 16

def gen_k3(a, stamps=False):
    name = "out_kernel"
    kernel_header(a, name)
    ST = Stamps(a, stamps)
    a("s_cmp_ge_u32 s2, 256")
    a("s_cbranch_scc1 L_k3_end")
    a("s_load_dwordx16 s[64:79], s[0:1], 0")
    a("s_load_dwordx8 s[80:87], s[0:1], 64")
    a("v_lshrrev_b32 v2, 6, v0")
    a(f"v_and_b32 v{vLANE}, 63, v0")
    a("s_nop 0")
    a(f"v_readfirstlane_b32 s{sW}, v2")
    L = f"v{vLANE}"
    a("s_and_b32 s3, s2, 7")
    a(f"s_lshr_b32 s{sROLE}, s3, 2")
    a("s_and_b32 s3, s3, 3")
    a("s_lshl_b32 s3, s3, 2")
    a("s_lshr_b32 s4, s2, 6")
    a(f"s_add_u32 s{sMI}, s3, s4")
    a("s_lshr_b32 s4, s2, 3")
    a(f"s_and_b32 s{sNI}, s4, 7")
    a(f"s_lshl_b32 s3, s{sMI}, 3")
    a(f"s_add_u32 s{sPAIR}, s3, s{sNI}")
    a("s_waitcnt lgkmcnt(0)")
    ST.init(); ST.stamp()
    a(f"s_cmp_eq_u32 s{sROLE}, 0")
    a(f"s_mov_b32 s5, 7168")
    a(f"s_cselect_b32 s48, 8192, s5")
    a(f"s_mov_b32 s5, {WS_H}")
    a(f"s_cselect_b32 s4, {WS_O}, s5")
    a(f"s_lshl_b32 s49, s48, 7")
    a(f"s_mul_i32 s3, s{sMI}, s49")
    a(f"s_add_u32 s3, s3, s4")
    srd_off(a, S_A, "s86", "s87", "s3", "s49")
    a(f"s_cmp_eq_u32 s{sROLE}, 0")
    a("s_cselect_b32 s4, s72, s80")
    a("s_cselect_b32 s5, s73, s81")
    a(f"s_lshl_b32 s6, s48, 10")
    srd(a, S_W, "s4", "s5", "s6")
    srd(a, S_X, "s64", "s65", 2048*1024*2)
    srd(a, S_OUT, "s82", "s83", 2048*1024*2)
    a(f"s_lshl_b32 s3, s{sPAIR}, 15")
    a(f"s_add_u32 s3, s3, {WS_EX}")
    srd_off(a, S_EX, "s86", "s87", "s3", 32768)
    a(f"s_lshl_b32 s3, s{sPAIR}, 8")
    a(f"s_add_u32 s3, s3, {WS_FLAG}")
    srd_off(a, S_FL, "s86", "s87", "s3", 256)
    a(f"s_cmp_eq_u32 s{sROLE}, 0")
    a(f"s_cselect_b32 s{sCNT}, 16, 14")
    a(f"s_lshr_b32 s3, s{sW}, 1")
    a(f"s_lshl_b32 s3, s3, 6")
    a(f"s_and_b32 s4, s{sW}, 1")
    a(f"s_lshl_b32 s4, s4, 2")
    a(f"s_add_u32 s3, s3, s4")
    a(f"v_lshrrev_b32 v2, 3, {L}")
    a(f"v_lshlrev_b32 v2, 3, v2")
    a(f"v_add_u32 v2, s3, v2")
    a(f"v_mul_lo_u32 v2, v2, s48")
    a(f"v_and_b32 v3, 7, {L}")
    a(f"v_lshl_add_u32 v{vAd}, v3, 4, v2")
    a(f"s_mul_i32 s{sMA}, s{sW}, {4*1040}")
    a(f"v_lshrrev_b32 v2, 4, {L}")
    a(f"v_lshlrev_b32 v2, 13, v2")
    a(f"v_and_b32 v3, 15, {L}")
    a(f"v_lshl_add_u32 v2, v3, 4, v2")
    a(f"s_lshl_b32 s3, s{sW}, 15")
    a(f"s_lshl_b32 s4, s{sNI}, 8")
    a(f"s_add_u32 s3, s3, s4")
    a(f"v_add_u32 v{vWd}, s3, v2")
    a(f"s_mul_i32 s{sMW}, s{sW}, {4*1088}")
    a(f"s_add_u32 s{sMW}, s{sMW}, {ASZ}")
    a(f"s_mov_b32 s{sKA}, 0")
    a(f"s_mov_b32 s{sKW}, 0")
    a(f"s_lshl_b32 s50, s48, 1")
    a(f"s_add_u32 s51, s50, s48")
    def dma_stage(slot):
        g = []
        for cc in range(4):
            so = [None, "s48", "s50", "s51"][cc]
            g.append([f"s_add_u32 m0, s{sMA}, {slot*RS + cc*1040}",
                      (f"s_add_u32 s{sT}, s{sKA}, {so}" if so else f"s_mov_b32 s{sT}, s{sKA}"),
                      f"buffer_load_dwordx4 v{vAd}, s[{S_A}:{S_A+3}], s{sT} offen lds"])
        for cc in range(4):
            g.append([f"s_add_u32 m0, s{sMW}, {slot*RS + cc*1088}",
                      f"s_add_u32 s{sT}, s{sKW}, {cc*2048}",
                      f"buffer_load_dwordx4 v{vWd}, s[{S_W}:{S_W+3}], s{sT} offen lds"])
        g[-1] = g[-1] + [f"s_add_u32 s{sKA}, s{sKA}, 128", f"s_add_u32 s{sKW}, s{sKW}, {64*2048}"]
        return g
    for slot in range(R):
        for grp in dma_stage(slot):
            for x in grp: a(x)
    a(f"v_mov_b32 v{vTK}, 1")
    a(f"v_mov_b32 v2, 0")
    a(f"s_cmp_eq_u32 s{sROLE}, 0")
    a("s_cbranch_scc1 L_k3_noticket")
    a(f"s_cmp_lg_u32 s{sW}, 0")
    a("s_cbranch_scc1 L_k3_noticket")
    a("s_mov_b64 exec, 1")
    a(f"buffer_atomic_add v{vTK}, v2, s[{S_FL}:{S_FL+3}], 0 offen sc0")
    a("s_mov_b64 exec, -1")
    a.label("L_k3_noticket")
    a(f"v_and_b32 v2, 7, {L}")
    a(f"v_mul_u32_u24 v2, 1040, v2")
    a(f"v_bfe_u32 v3, {L}, 3, 2")
    a(f"v_lshl_add_u32 v2, v3, 7, v2")
    a(f"v_lshrrev_b32 v30, 5, {L}")
    a(f"v_lshl_add_u32 v2, v30, 4, v2")
    a(f"s_and_b32 s3, s{sW}, 1")
    a(f"s_mul_i32 s3, s3, 8320")
    a(f"v_add_u32 v{vAr[0]}, s3, v2")
    a(f"v_add_u32 v{vAr[1]}, {2*RS}, v{vAr[0]}")
    a(f"v_bfe_u32 v27, {L}, 2, 2")
    a(f"v_and_b32 v28, 3, {L}")
    a(f"v_bfe_u32 v29, {L}, 4, 1")
    a(f"v_and_b32 v31, 1, v28")
    a(f"v_lshrrev_b32 v32, 1, v28")
    a(f"v_mul_u32_u24 v2, 1088, v27")
    a(f"v_lshl_add_u32 v2, v30, 9, v2")
    a(f"v_lshl_add_u32 v2, v31, 5, v2")
    a(f"v_lshl_add_u32 v2, v29, 4, v2")
    a(f"v_lshl_add_u32 v2, v32, 3, v2")
    a(f"s_lshr_b32 s3, s{sW}, 1")
    a(f"s_lshl_b32 s3, s3, 7")
    a(f"s_add_u32 s3, s3, {ASZ}")
    a(f"v_add_u32 v{vWr[0]}, s3, v2")
    a(f"v_add_u32 v{vWr[1]}, {2*RS}, v{vWr[0]}")
    a(f"v_and_b32 v2, 31, {L}")
    a(f"s_lshl_b32 s3, s{sMI}, 7")
    a(f"s_and_b32 s4, s{sW}, 1")
    a(f"s_lshl_b32 s4, s4, 6")
    a(f"s_add_u32 s3, s3, s4")
    a(f"v_add_u32 v2, s3, v2")
    a(f"v_lshlrev_b32 v2, 11, v2")
    a(f"v_lshl_add_u32 v2, v30, 5, v2")
    a(f"s_lshl_b32 s3, s{sNI}, 8")
    a(f"s_lshr_b32 s4, s{sW}, 1")
    a(f"s_lshl_b32 s4, s4, 7")
    a(f"s_add_u32 s3, s3, s4")
    a(f"v_add_u32 v{vXo}, s3, v2")
    a(f"v_lshlrev_b32 v{vEx}, 4, v0")
    for i in range(64): a(f"v_accvgpr_write_b32 a{i}, 0")

    def reads(slot, s):
        st = s & 3
        win = slot >> 1; base = (slot & 1) * RS
        out = []
        for mt in range(2):
            b = AF + 8*st + 4*mt
            out.append(f"ds_read_b128 v[{b}:{b+3}], v{vAr[win]} offset:{base + mt*512 + s*32}")
        for nt in range(2):
            b = WF + 8*st + 4*nt
            for u in range(2):
                out.append(f"ds_read_b64_tr_b16 v[{b+2*u}:{b+2*u+1}], v{vWr[win]} offset:{base + s*4352 + u*256 + nt*64}")
        return out
    a("s_waitcnt vmcnt(24)")
    a("s_barrier")
    ST.stamp()
    for s in range(2):
        for x in reads(0, s): a(x)
    a.raw(".p2align 6")
    a.label("L_k3_loop")
    for slot in range(R):
        nslot = (slot + 1) % R
        dg = dma_stage(slot)
        for s in range(4):
            if s < 2: rd = reads(slot, s + 2)
            else: rd = reads(nslot, s - 2)
            G = [[] for _ in range(4)]
            if s == 2:
                G[2] = rd[:3]; G[3] = rd[3:]
            else:
                G[0] = rd[:3]; G[1] = rd[3:]
            if s == 2:
                G[2] += dg[0]; G[3] += dg[1]
            if s == 3:
                G[0] += dg[2]; G[1] += dg[3]; G[2] += dg[4]; G[3] += dg[5]
            i = 0
            for nt in range(2):
                for mt in range(2):
                    if i == 0:
                        if s == 3: a("s_waitcnt lgkmcnt(6)")
                        else: a("s_waitcnt lgkmcnt(6)")
                    if s == 2 and i == 2:
                        a("s_waitcnt vmcnt(16) lgkmcnt(0)")
                        a("s_barrier")
                    st = s & 3
                    b = acc(nt, mt)
                    a(f"v_mfma_f32_32x32x16_bf16 a[{b}:{b+15}], v[{WF+8*st+4*nt}:{WF+8*st+4*nt+3}], v[{AF+8*st+4*mt}:{AF+8*st+4*mt+3}], a[{b}:{b+15}]")
                    for x in G[i]: a(x)
                    if s == 3 and i == 3:
                        for x in dg[6] + dg[7]: a(x)
                    i += 1
    a(f"s_sub_u32 s{sCNT}, s{sCNT}, 1")
    a(f"s_cmp_lg_u32 s{sCNT}, 2")
    a("s_cbranch_scc1 L_k3_notk2")
    a(f"s_cmp_lg_u32 s{sROLE}, 0")
    a("s_cbranch_scc1 L_k3_notk2")
    a(f"s_cmp_lg_u32 s{sW}, 0")
    a("s_cbranch_scc1 L_k3_notk2")
    a("v_mov_b32 v2, 0")
    a("s_mov_b64 exec, 1")
    a(f"buffer_atomic_add v{vTK}, v2, s[{S_FL}:{S_FL+3}], 0 offen sc0")
    a("s_mov_b64 exec, -1")
    a.label("L_k3_notk2")
    a(f"s_cmp_lg_u32 s{sCNT}, 0")
    a("s_cbranch_scc1 L_k3_loop")
    ST.stamp()
    a("s_waitcnt vmcnt(0) lgkmcnt(0)")
    for nt in range(2):
        for mt in range(2):
            b = XR + (2*nt+mt)*8
            a(f"s_mov_b32 s4, {mt*32*2048}")
            a(f"buffer_load_dwordx4 v[{b}:{b+3}], v{vXo}, s[{S_X}:{S_X+3}], s4 offen offset:{nt*64}")
            a(f"buffer_load_dwordx4 v[{b+4}:{b+7}], v{vXo}, s[{S_X}:{S_X+3}], s4 offen offset:{nt*64+16}")
    a(f"v_mov_b32 v2, {R*RS}")
    a(f"s_cmp_lg_u32 s{sW}, 0")
    a("s_cbranch_scc1 L_k3_nowr")
    a("s_mov_b64 exec, 1")
    a(f"ds_write_b32 v2, v{vTK}")
    a("s_mov_b64 exec, -1")
    a.label("L_k3_nowr")
    a("s_nop 7")
    a(f"s_mov_b32 s3, {f32(-1.4426950408889634)}")
    for t in range(4):
        b = t * 16
        for j in range(16): a(f"v_accvgpr_read_b32 v{T0+j}, a{b+j}")
        for j in range(8): a(f"v_cvt_pk_bf16_f32 v{OW+8*t+j}, v{T0+2*j}, v{T0+2*j+1}")
    a(f"s_cmp_eq_u32 s{sROLE}, 0")
    a("s_cbranch_scc1 L_k3_nosilu")
    for t in range(4):
        for j in range(8):
            a(f"v_lshlrev_b32 v{T0+2*j}, 16, v{OW+8*t+j}")
            a(f"v_and_b32 v{T0+2*j+1}, 0xffff0000, v{OW+8*t+j}")
        for j in range(16): a(f"v_mul_f32 v{T0+16+j}, s3, v{T0+j}")
        for j in range(16): a(f"v_exp_f32 v{T0+16+j}, v{T0+16+j}")
        for j in range(16): a(f"v_add_f32 v{T0+16+j}, 1.0, v{T0+16+j}")
        for j in range(16): a(f"v_rcp_f32 v{T0+16+j}, v{T0+16+j}")
        a("s_nop 0")
        for j in range(16): a(f"v_mul_f32 v{T0+j}, v{T0+j}, v{T0+16+j}")
        for j in range(8): a(f"v_cvt_pk_bf16_f32 v{OW+8*t+j}, v{T0+2*j}, v{T0+2*j+1}")
    a.label("L_k3_nosilu")
    a("s_waitcnt lgkmcnt(0)")
    a("s_barrier")
    a(f"ds_read_b32 v3, v2")
    a("s_waitcnt lgkmcnt(0)")
    a(f"v_readfirstlane_b32 s{sTK}, v3")
    a("s_nop 3")
    a(f"s_cmp_lg_u32 s{sTK}, 0")
    a("s_cbranch_scc1 L_k3_finish")
    for i in range(8):
        a(f"s_mov_b32 s4, {i*4096}")
        a(f"buffer_store_dwordx4 v[{OW+4*i}:{OW+4*i+3}], v{vEx}, s[{S_EX}:{S_EX+3}], s4 offen sc0 sc1")
    a("s_waitcnt vmcnt(0)")
    a("s_barrier")
    a(f"s_cmp_lg_u32 s{sW}, 0")
    a("s_cbranch_scc1 L_k3_done")
    a("v_mov_b32 v2, 128")
    a("v_mov_b32 v3, 1")
    a("s_mov_b64 exec, 1")
    a(f"buffer_store_dword v3, v2, s[{S_FL}:{S_FL+3}], 0 offen sc0 sc1")
    a("s_mov_b64 exec, -1")
    a("s_branch L_k3_done")
    a.label("L_k3_finish")
    a(f"s_cmp_lg_u32 s{sW}, 0")
    a("s_cbranch_scc1 L_k3_polled")
    a("v_mov_b32 v2, 128")
    a.label("L_k3_poll")
    a(f"buffer_load_dword v3, v2, s[{S_FL}:{S_FL+3}], 0 offen sc0 sc1")
    a("s_waitcnt vmcnt(0)")
    a("v_readfirstlane_b32 s4, v3")
    a("s_nop 3")
    a("s_cmp_lg_u32 s4, 0")
    a("s_cbranch_scc1 L_k3_polled")
    a("s_sleep 2")
    a("s_branch L_k3_poll")
    a.label("L_k3_polled")
    a("s_barrier")
    for i in range(8):
        a(f"s_mov_b32 s4, {i*4096}")
        a(f"buffer_load_dwordx4 v[{PR+4*i}:{PR+4*i+3}], v{vEx}, s[{S_EX}:{S_EX+3}], s4 offen sc0 sc1")
    a("s_waitcnt vmcnt(0)")
    for t in range(4):
        nt, mt = t >> 1, t & 1
        for j in range(8):
            o = OW + 8*t + j; p = PR + 8*t + j
            a(f"v_lshlrev_b32 v{T0+2*j}, 16, v{o}")
            a(f"v_and_b32 v{T0+2*j+1}, 0xffff0000, v{o}")
            a(f"v_lshlrev_b32 v{T0+16+2*j}, 16, v{p}")
            a(f"v_and_b32 v{T0+16+2*j+1}, 0xffff0000, v{p}")
        for j in range(16): a(f"v_mul_f32 v{T0+j}, v{T0+j}, v{T0+16+j}")
        for j in range(8): a(f"v_cvt_pk_bf16_f32 v{T0+16+j}, v{T0+2*j}, v{T0+2*j+1}")
        for j in range(8):
            x = XR + 8*t + j
            a(f"v_lshlrev_b32 v{T0+2*j}, 16, v{T0+16+j}")
            a(f"v_and_b32 v{T0+2*j+1}, 0xffff0000, v{T0+16+j}")
            a(f"v_lshlrev_b32 v{T0+24+(2*j)%8}, 16, v{x}")
            a(f"v_and_b32 v{T0+24+(2*j+1)%8}, 0xffff0000, v{x}")
            a(f"v_add_f32 v{T0+2*j}, v{T0+2*j}, v{T0+24+(2*j)%8}")
            a(f"v_add_f32 v{T0+2*j+1}, v{T0+2*j+1}, v{T0+24+(2*j+1)%8}")
        for j in range(8): a(f"v_cvt_pk_bf16_f32 v{OW+8*t+j}, v{T0+2*j}, v{T0+2*j+1}")
        a(f"s_mov_b32 s4, {mt*32*2048}")
        a(f"buffer_store_dwordx4 v[{OW+8*t}:{OW+8*t+3}], v{vXo}, s[{S_OUT}:{S_OUT+3}], s4 offen offset:{nt*64}")
        a(f"buffer_store_dwordx4 v[{OW+8*t+4}:{OW+8*t+7}], v{vXo}, s[{S_OUT}:{S_OUT+3}], s4 offen offset:{nt*64+16}")
    a.label("L_k3_done")
    ST.stamp()
    if stamps:
        a(f"s_cmp_lg_u32 s2, 0")
        a("s_cbranch_scc1 L_k3_end")
        srd(a, 96, "s84", "s85", 256)
        a("v_lshlrev_b32 v62, 2, v0")
        a(f"buffer_store_dword v63, v62, s[96:99], 0 offen")
    a.label("L_k3_end")
    a("s_endpgm")
    return kernel_desc(name, 256, 64, 102), f"; @launch kernel={name} grid=(256,1,1) block=(256,1,1) lds={LDS_BYTES}"
```

```python
import sys, os
sys.path.insert(0, os.path.dirname(os.path.abspath(__file__)))
from common import *
import k1_ln, k2
def build(path, dbg_q=False, stages=("ln","k2")):
    a = Asm()
    descs = []; launches = []
    d, l = k1_ln.gen_ln(a); descs.append(d); launches.append(l)
    n = k2.gen_k2(a, dbg_q=dbg_q, stamps=("stamps" in stages))
    if "attn" in stages:
        import k2_attn
        k2_attn.gen_attn(a)
    d, l = k2.gen_k2_end(a, n); descs.append(d); launches.append(l)
    if "attn" in stages:
        k2_attn.gen_attn_rare(a)
    if "k3" in stages:
        import k3
        d, l = k3.gen_k3(a, stamps=("stamps" in stages)); descs.append(d); launches.append(l)
    hdr = "; generated by gen/gen.py\n" + "\n".join(launches) + "\n"
    txt = hdr + '.amdgcn_target "amdgcn-amd-amdhsa--gfx950"\n.text\n' + a.text() + '.section .rodata,"a"\n' + "".join(descs)
    open(path, "w").write(txt)
if __name__ == "__main__":
    out = sys.argv[1]
    st = sys.argv[2].split(",") if len(sys.argv) > 2 else ["ln","k2","attn","k3"]
    build(out, dbg_q=("dbgq" in st), stages=st)
```
